```python
import torch

def _softmax(x, axis=-1):
    return torch.softmax(x, dim=axis)
def _gelu(x):
    return torch.nn.functional.gelu(x, approximate="tanh")
def _silu(x):
    return torch.nn.functional.silu(x)
def _sigmoid(x):
    return torch.sigmoid(x)
def _layernorm(x, axis=-1, eps=1e-5):
    m = x.mean(dim=axis, keepdim=True)
    v = x.var(dim=axis, keepdim=True, unbiased=False)
    return (x - m) / torch.sqrt(v + eps)
def _scatter_add(tgt, idx, src, axis=0):
    return tgt.clone().index_add_(axis, idx, src)
def _segment_sum(src, seg, n):
    out = torch.zeros((n,) + src.shape[1:], dtype=src.dtype)
    return out.index_add_(0, seg, src)
def _pad(x, pw):
    flat = tuple(v for pair in reversed(pw) for v in pair)
    return torch.nn.functional.pad(x, flat)

kernel_name = 'standalone__mha_block_cached__near_ridge'

def setup_inputs():

    _w = (lambda a: (lambda t: t.to(torch.bfloat16) if t.is_floating_point() else t)(torch.as_tensor(a)))
    B, Sq, D = 32, 192, 448
    H, Sk, Dh = 16, 512, 256
    return {
        "x": _w((lambda *s: torch.randn(*s, dtype=torch.bfloat16) * 0.8)(B, Sq, D)),
        "k_cache": _w((lambda *s: torch.randn(*s, dtype=torch.bfloat16) * 0.8)(B, H, Sk, Dh)),
        "v_cache": _w((lambda *s: torch.randn(*s, dtype=torch.bfloat16) * 0.05)(B, H, Sk, Dh)),
        "wq": _w((lambda *s: torch.randn(*s, dtype=torch.bfloat16) * 0.8)(D, H * Dh) * (D ** -0.5)),
        "wo": _w((lambda *s: torch.randn(*s, dtype=torch.bfloat16) * 0.05)(H * Dh, D) * ((H * Dh) ** -0.5)),
    }

def reference(x, k_cache, v_cache, wq, wo):
    B, Sq, D = x.shape
    H, Dh = 16, 256
    q = (lambda x, *d: x.permute(*d))((x @ wq).reshape(B, Sq, H, Dh), 0, 2, 1, 3)
    scores = torch.einsum("bhqd,bhkd->bhqk", q, k_cache) * (Dh ** -0.5)
    p = _softmax(scores, axis=-1)
    o = torch.einsum("bhqk,bhkd->bhqd", p, v_cache)
    return (lambda x, *d: x.permute(*d))(o, 0, 2, 1, 3).reshape(B, Sq, H * Dh) @ wo
```

```python
import sys
NAME = "standalone__mha_block_cached__near_ridge_kernel"
def wrap(body, grid, block, lds, nv=256, acc=256, ns=102):
    return f"""; @launch grid=({grid},1,1) block=({block},1,1) lds={lds}
.amdgcn_target "amdgcn-amd-amdhsa--gfx950"
.text
.globl {NAME}
.p2align 8
.type {NAME},@function
{NAME}:
{body}
s_endpgm
.section .rodata,"a"
.p2align 6
.amdhsa_kernel {NAME}
  .amdhsa_next_free_vgpr {nv}
  .amdhsa_next_free_sgpr {ns}
  .amdhsa_accum_offset {acc}
  .amdhsa_group_segment_fixed_size 0
  .amdhsa_kernarg_size 64
  .amdhsa_user_sgpr_count 2
  .amdhsa_user_sgpr_kernarg_segment_ptr 1
  .amdhsa_system_sgpr_workgroup_id_x 1
.end_amdhsa_kernel
"""

def empty():
    return wrap("", 256, 256, 163840, 512, 256)

def stream(nslots=9, pattern="piece", nt=False, barrier=True, sleep=0):
    L = []
    a = L.append
    a("s_cmp_ge_u32 s2, 256"); a("s_cbranch_scc1 L_end")
    a("s_load_dwordx4 s[4:7], s[0:1], 8")
    a("s_waitcnt lgkmcnt(0)")
    a("s_mov_b32 s8, s4"); a("s_and_b32 s9, s5, 0xffff"); a("s_mov_b32 s10, 0x8000000"); a("s_mov_b32 s11, 0x20000")
    a("s_mov_b32 s12, s6"); a("s_and_b32 s13, s7, 0xffff"); a("s_mov_b32 s14, 0x8000000"); a("s_mov_b32 s15, 0x20000")
    a("v_lshrrev_b32 v1, 6, v0"); a("s_nop 0"); a("v_readfirstlane_b32 s16, v1")
    a("v_and_b32 v2, 63, v0")
    if pattern == "piece":
        a("v_lshrrev_b32 v3, 1, v2"); a("v_and_b32 v3, 7, v3"); a("v_lshlrev_b32 v3, 9, v3")
        a("v_lshrrev_b32 v4, 4, v2"); a("v_lshlrev_b32 v4, 5, v4")
        a("v_and_b32 v5, 1, v2"); a("v_lshlrev_b32 v5, 4, v5")
        a("v_add3_u32 v3, v3, v4, v5")
        a("v_lshlrev_b32 v4, 12, v1"); a("v_add_u32 v3, v3, v4")
        step = 128
    else:
        a("v_lshlrev_b32 v3, 4, v2"); a("v_lshlrev_b32 v4, 12, v1"); a("v_add_u32 v3, v3, v4")
        step = 1024
    a("s_lshl_b32 s17, s2, 19")
    a("s_lshl_b32 s18, s16, 12")
    ntile = 64
    def issue(t):
        slot = t % nslots
        srd = "s[8:11]" if t % 2 == 0 else "s[12:15]"
        a(f"s_add_u32 s19, s17, {(t//2)*16384}")
        for i in range(4):
            a(f"s_add_u32 m0, s18, {slot*16384 + i*(1024-step)}")
            a("s_nop 0")
            a(f"buffer_load_dwordx4 v3, {srd}, s19 offen offset:{i*step}" + (" nt" if nt else "") + " lds")
    for t in range(nslots-1):
        issue(t)
    for t in range(ntile):
        rem = min(ntile, t+nslots-1) - (t+1)
        a(f"s_waitcnt vmcnt({rem*4})")
        if barrier: a("s_barrier")
        if sleep: a(f"s_sleep {sleep}")
        if t+nslots-1 < ntile: issue(t+nslots-1)
    a("L_end:")
    return wrap("\n".join(L), 256, 256, 163840, 64, 64)

def mfma(shape=16, n=5760, zero=False):
    L = []
    a = L.append
    a("s_cmp_ge_u32 s2, 256"); a("s_cbranch_scc1 L_end")
    a("s_load_dwordx4 s[4:7], s[0:1], 8")
    a("s_load_dwordx2 s[20:21], s[0:1], 48")
    a("s_waitcnt lgkmcnt(0)")
    a("s_mov_b32 s8, s4"); a("s_and_b32 s9, s5, 0xffff"); a("s_mov_b32 s10, 0x8000000"); a("s_mov_b32 s11, 0x20000")
    a("v_lshlrev_b32 v1, 4, v0")
    a("s_lshl_b32 s17, s2, 16")
    for i in range(16):
        a(f"buffer_load_dwordx4 v[{64+4*i}:{67+4*i}], v1, s[8:11], s17 offen")
        a("s_add_u32 s17, s17, 4096")
    for i in range(192): a(f"v_accvgpr_write_b32 a{i}, 0")
    a("s_waitcnt vmcnt(0)")
    if zero:
        for i in range(64,128): a(f"v_mov_b32 v{i}, 0")
    a("s_memtime s[24:25]"); a("s_memrealtime s[26:27]")
    a("s_waitcnt lgkmcnt(0)")
    if shape == 16:
        per = 48
        a(f"s_mov_b32 s3, {n//per}")
        a("L_loop:")
        for i in range(48):
            A = 64 + 4*((i//3) % 8); B = 96 + 4*((i*5) % 8)
            a(f"v_mfma_f32_16x16x32_bf16 a[{4*i}:{4*i+3}], v[{A}:{A+3}], v[{B}:{B+3}], a[{4*i}:{4*i+3}]")
    else:
        per = 24
        a(f"s_mov_b32 s3, {n//48}")
        a("L_loop:")
        for i in range(24):
            A = 64 + 4*((i//3) % 8); B = 96 + 4*((i*5) % 8); j = i % 12
            a(f"v_mfma_f32_32x32x16_bf16 a[{16*j}:{16*j+15}], v[{A}:{A+3}], v[{B}:{B+3}], a[{16*j}:{16*j+15}]")
    a("s_sub_u32 s3, s3, 1"); a("s_cmp_lg_u32 s3, 0"); a("s_cbranch_scc1 L_loop")
    a("s_memtime s[28:29]"); a("s_memrealtime s[30:31]")
    a("s_waitcnt lgkmcnt(0)")
    a("s_sub_u32 s28, s28, s24"); a("s_sub_u32 s30, s30, s26")
    a("s_cmp_lg_u32 s2, 100"); a("s_cbranch_scc1 L_end")
    a("v_mov_b32 v2, s28"); a("v_mov_b32 v3, s30"); a("v_mov_b32 v1, 0")
    a("global_store_dwordx2 v1, v[2:3], s[20:21]")
    a("L_end:")
    return wrap("\n".join(L), 256, 256, 163840, 512, 256)

open("mb_empty.s","w").write(empty())
open("mb_stream9.s","w").write(stream(9))
open("mb_stream9nt.s","w").write(stream(9, nt=True))
open("mb_stream9lin.s","w").write(stream(9, pattern="lin"))
open("mb_stream5.s","w").write(stream(5))
open("mb_stream10.s","w").write(stream(10))
open("mb_mfma16.s","w").write(mfma(16))
open("mb_mfma32.s","w").write(mfma(32))

def mfma_trace(shape=16, outer=30, inner=4, pad=0, lds=0, valu=0):
    L = []
    a = L.append
    a("s_cmp_ge_u32 s2, 256"); a("s_cbranch_scc1 L_end")
    a("s_load_dwordx4 s[4:7], s[0:1], 8")
    a("s_load_dwordx2 s[20:21], s[0:1], 48")
    a("s_waitcnt lgkmcnt(0)")
    a("s_mov_b32 s8, s4"); a("s_and_b32 s9, s5, 0xffff"); a("s_mov_b32 s10, 0x8000000"); a("s_mov_b32 s11, 0x20000")
    a("v_lshlrev_b32 v1, 4, v0")
    a("s_lshl_b32 s17, s2, 16")
    for i in range(16):
        a(f"buffer_load_dwordx4 v[{64+4*i}:{67+4*i}], v1, s[8:11], s17 offen")
        a("s_add_u32 s17, s17, 4096")
    for i in range(192): a(f"v_accvgpr_write_b32 a{i}, 0")
    a("s_waitcnt vmcnt(0)")
    for i in range(4):
        a(f"ds_write_b128 v1, v[{64+4*i}:{67+4*i}] offset:{4096*i}")
    a("v_and_b32 v4, 63, v0"); a("v_lshlrev_b32 v4, 4, v4")
    a("s_waitcnt lgkmcnt(0)"); a("s_barrier")
    a("s_memtime s[24:25]"); a("s_memrealtime s[26:27]")
    a("s_waitcnt lgkmcnt(0)")
    a("v_mov_b32 v10, 0")
    for o in range(outer):
        a(f"s_mov_b32 s3, {inner}")
        a(f"L_loop{o}:")
        if shape == 16:
            for i in range(48):
                A = 64 + 4*((i//3) % 8); B = 96 + 4*((i*5) % 8)
                a(f"v_mfma_f32_16x16x32_bf16 a[{4*i}:{4*i+3}], v[{A}:{A+3}], v[{B}:{B+3}], a[{4*i}:{4*i+3}]")
                if lds and i % 3 == 0:
                    A2 = 64 + 4*((i//3 + 4) % 8)
                    if lds == 1: a(f"ds_read_b128 v[{A2}:{A2+3}], v4 offset:{(i//3)*1024}")
                    else:
                        a(f"ds_read_b64_tr_b16 v[{A2}:{A2+1}], v4 offset:{(i//3)*1024}")
                        a(f"ds_read_b64_tr_b16 v[{A2+2}:{A2+3}], v4 offset:{(i//3)*1024+8}")
                    a("s_waitcnt lgkmcnt(%d)" % (3 if lds == 1 else 6))
                if valu and i % 2 == 1:
                    for z in range(valu): a(f"v_exp_f32 v{20+z+2*(i%8)}, v{40+z}")
                if pad: a(f"s_nop {pad-1}")
        else:
            for i in range(24):
                A = 64 + 4*((i//3) % 8); B = 96 + 4*((i*5) % 8); j = i % 12
                a(f"v_mfma_f32_32x32x16_bf16 a[{16*j}:{16*j+15}], v[{A}:{A+3}], v[{B}:{B+3}], a[{16*j}:{16*j+15}]")
                if pad: a(f"s_nop {pad-1}")
        a("s_sub_u32 s3, s3, 1"); a("s_cmp_lg_u32 s3, 0"); a(f"s_cbranch_scc1 L_loop{o}")
        a("s_memtime s[28:29]"); a("s_memrealtime s[30:31]")
        a("s_waitcnt lgkmcnt(0)")
        a("s_sub_u32 s28, s28, s24"); a("s_sub_u32 s30, s30, s26")
        a(f"v_writelane_b32 v10, s28, {2*o}"); a(f"v_writelane_b32 v10, s30, {2*o+1}")
    a("s_cmp_lg_u32 s2, 100"); a("s_cbranch_scc1 L_end")
    a("v_cmp_gt_u32 vcc, 64, v0"); a("s_and_saveexec_b64 s[32:33], vcc"); a("s_cbranch_execz L_end")
    a("v_lshlrev_b32 v1, 2, v0")
    a("global_store_dword v1, v10, s[20:21]")
    a("L_end:")
    return wrap("\n".join(L), 256, 256, 163840, 512, 256)
open("mb_t16.s","w").write(mfma_trace(16))
open("mb_t16p4.s","w").write(mfma_trace(16, pad=4))
open("mb_t16p6.s","w").write(mfma_trace(16, pad=6))
open("mb_t16l1.s","w").write(mfma_trace(16, lds=1))
open("mb_t16l2.s","w").write(mfma_trace(16, lds=2))
open("mb_t16l2v.s","w").write(mfma_trace(16, lds=2, valu=1))
open("mb_t32.s","w").write(mfma_trace(32))
```

```python
from mb import wrap
def gaps(pattern, name, iters=100, unroll=1):
    L = []
    a = L.append
    a("s_cmp_ge_u32 s2, 256"); a("s_cbranch_scc1 L_end")
    a("s_load_dwordx4 s[4:7], s[0:1], 8")
    a("s_load_dwordx2 s[20:21], s[0:1], 48")
    a("s_waitcnt lgkmcnt(0)")
    a("s_mov_b32 s8, s4"); a("s_and_b32 s9, s5, 0xffff"); a("s_mov_b32 s10, 0x8000000"); a("s_mov_b32 s11, 0x20000")
    a("v_lshlrev_b32 v1, 4, v0")
    a("s_lshl_b32 s17, s2, 16")
    for i in range(16):
        a(f"buffer_load_dwordx4 v[{64+4*i}:{67+4*i}], v1, s[8:11], s17 offen")
        a("s_add_u32 s17, s17, 4096")
    for i in range(192): a(f"v_accvgpr_write_b32 a{i}, 0")
    for i in range(128, 200): a(f"v_mov_b32 v{i}, 0.5")
    a("s_waitcnt vmcnt(0)")
    for i in range(4):
        a(f"ds_write_b128 v1, v[{64+4*i}:{67+4*i}] offset:{4096*i}")
    a("v_and_b32 v4, 63, v0"); a("v_lshlrev_b32 v5, 3, v4"); a("v_lshlrev_b32 v4, 4, v4")
    a("v_lshrrev_b32 v6, 6, v0"); a("s_nop 0"); a("v_readfirstlane_b32 s16, v6"); a("s_lshl_b32 s18, s16, 12"); a("s_add_u32 s18, s18, 65536")
    a("s_mov_b32 m0, s18")
    a("s_lshl_b32 s17, s2, 16")
    a("s_waitcnt lgkmcnt(0)"); a("s_barrier")
    a("s_memtime s[24:25]"); a("s_memrealtime s[26:27]")
    a("s_waitcnt lgkmcnt(0)")
    a(f"s_mov_b32 s3, {iters}")
    a(".p2align 6")
    a("L_loop:")
    cnt = {"r":0, "e":0, "t":0}
    for ii in range(48*unroll):
        i = ii % 48
        A = 64 + 4*((i//3) % 8); B = 96 + 4*((i*5) % 8)
        a(f"v_mfma_f32_16x16x32_bf16 a[{4*i}:{4*i+3}], v[{A}:{A+3}], v[{B}:{B+3}], a[{4*i}:{4*i+3}]")
        for c in pattern[i % len(pattern)]:
            if c == "r":
                k = cnt["r"]; cnt["r"] += 1
                a(f"ds_read_b128 v[{200+4*(k%8)}:{203+4*(k%8)}], v4 offset:{(k%16)*1024}")
            elif c == "t":
                k = cnt["t"]; cnt["t"] += 1
                a(f"ds_read_b64_tr_b16 v[{200+2*(k%16)}:{201+2*(k%16)}], v5 offset:{(k%32)*512}")
            elif c == "e":
                k = cnt["e"]; cnt["e"] += 1
                a(f"v_exp_f32 v{128+k%24}, v{152+k%24}")
            elif c == "a":
                k = cnt["e"]; cnt["e"] += 1
                a(f"v_add_f32 v{176+k%6}, v{152+k%24}, v{176+k%6}")
            elif c == "c":
                k = cnt["e"]; cnt["e"] += 1
                a(f"v_cvt_pk_bf16_f32 v{128+k%24}, v{152+k%24}, v{153+k%23}")
            elif c == "p":
                k = cnt["e"]; cnt["e"] += 1
                a(f"v_pk_add_f32 v[{176+2*(k%3)}:{177+2*(k%3)}], v[{152+2*(k%12)}:{153+2*(k%12)}], v[{176+2*(k%3)}:{177+2*(k%3)}]")
            elif c == "w": a("s_waitcnt lgkmcnt(6)")
            elif c == "s": a("s_add_u32 s40, s40, 1")
            elif c == "n": a("s_nop 0")
            elif c == "S": a("s_add_u32 s40, s40, 0x12345")
            elif c == "A":
                k = cnt["e"]; cnt["e"] += 1
                a(f"v_add_f32_e64 v{176+k%6}, v{152+k%24}, v{176+k%6}")
            elif c == "m": a("s_mov_b32 m0, s18")
            elif c == "x": a("buffer_load_dwordx4 v[232:235], v1, s[8:11], s17 offen")
            elif c == "y":
                k = cnt["e"]; cnt["e"] += 1
                a(f"v_accvgpr_write_b32 a{200+k%24}, v{128+k%24}")
            elif c == "z":
                k = cnt["e"]; cnt["e"] += 1
                a(f"v_permlane32_swap_b32 v{128+2*(k%12)}, v{129+2*(k%12)}")
            elif c == "M":
                k = cnt["e"]; cnt["e"] += 1
                a(f"v_pk_mul_f32 v[{128+2*(k%12)}:{129+2*(k%12)}], v[{152+2*(k%12)}:{153+2*(k%12)}], v[176:177]")
            elif c == "D":
                k = cnt["e"]; cnt["e"] += 1
                a(f"v_dot2_f32_bf16 v{176+k%6}, v{152+k%24}, v190, v{176+k%6}")

            elif c == "d": a("buffer_load_dwordx4 v1, s[8:11], s17 offen lds")
            elif c == "v": a("s_waitcnt vmcnt(24)")
            elif c == "b": a("s_barrier")
            elif c == "g":
                k = cnt["e"]; cnt["e"] += 1
                a(f"v_accvgpr_read_b32 v{128+k%24}, a{200+k%24}")
    a("s_sub_u32 s3, s3, 1"); a("s_cmp_lg_u32 s3, 0"); a(f"s_cbranch_scc1 L_loop") if unroll < 50 else None
    a("s_memtime s[28:29]"); a("s_memrealtime s[30:31]")
    a("s_waitcnt lgkmcnt(0) vmcnt(0)")
    a("s_sub_u32 s28, s28, s24"); a("s_sub_u32 s30, s30, s26")
    a("s_cmp_lg_u32 s2, 100"); a("s_cbranch_scc1 L_end")
    a("v_mov_b32 v2, s28"); a("v_mov_b32 v3, s30"); a("v_mov_b32 v1, 0")
    a("global_store_dwordx2 v1, v[2:3], s[20:21]")
    a("L_end:")
    open(name, "w").write(wrap("\n".join(L), 256, 256, 163840, 512, 256))


for nm, p in {"b8": [""], "b12": ["s"], "b16": ["t"], "b15": ["t","wt",""], "b17":["t","t","t","ta"], "b20": ["ta"], "b24": ["wta"], "b28":["scc"]}.items():
    gaps(p, f"u_{nm}.s", 1, 100 if nm not in ("b8","b12") else 100)
    gaps(p, f"u_{nm}_loop.s", 25, 4)
```
